```python
import torch

def _softmax(x, axis=-1):
    return torch.softmax(x, dim=axis)
def _gelu(x):
    return torch.nn.functional.gelu(x, approximate="tanh")
def _silu(x):
    return torch.nn.functional.silu(x)
def _sigmoid(x):
    return torch.sigmoid(x)
def _layernorm(x, axis=-1, eps=1e-5):
    m = x.mean(dim=axis, keepdim=True)
    v = x.var(dim=axis, keepdim=True, unbiased=False)
    return (x - m) / torch.sqrt(v + eps)
def _scatter_add(tgt, idx, src, axis=0):
    return tgt.clone().index_add_(axis, idx, src)
def _segment_sum(src, seg, n):
    out = torch.zeros((n,) + src.shape[1:], dtype=src.dtype)
    return out.index_add_(0, seg, src)
def _pad(x, pw):
    flat = tuple(v for pair in reversed(pw) for v in pair)
    return torch.nn.functional.pad(x, flat)

kernel_name = 'parallel_sum__gqa_block_cached__glu_gated_reglu__decode'

def setup_inputs():

    _w = (lambda a: (lambda t: t.to(torch.bfloat16) if t.is_floating_point() else t)(torch.as_tensor(a)))
    def _A_setup():
        B, Sq, D = 8, 1, 512
        Hq, Hkv, Sk, Dh = 32, 32, 4096, 128
        assert Hq % Hkv == 0, (Hq, Hkv)
        return {
            "x": _w((lambda *s: torch.randn(*s, dtype=torch.bfloat16) * 0.05)(B, Sq, D)),
            "k_cache": _w((lambda *s: torch.randn(*s, dtype=torch.bfloat16) * 1.6)(B, Hkv, Sk, Dh)),
            "v_cache": _w((lambda *s: torch.randn(*s, dtype=torch.bfloat16) * 0.8)(B, Hkv, Sk, Dh)),
            "wq": _w((lambda *s: torch.randn(*s, dtype=torch.bfloat16) * 1.6)(D, Hq * Dh) * (D ** -0.5)),
            "wo": _w((lambda *s: torch.randn(*s, dtype=torch.bfloat16) * 0.8)(Hq * Dh, D) * ((Hq * Dh) ** -0.5)),
        }
    _A_in = _A_setup()

    def _B_setup():
        B, S, D, F = 8, 1, 512, 1376
        return {
            "x": _w((lambda *s: torch.randn(*s, dtype=torch.bfloat16) * 0.05)(B, S, D)),
            "W_gate": _w((lambda *s: torch.randn(*s, dtype=torch.bfloat16) * 0.4)(D, F) * (2.0 / D) ** 0.5),
            "W_up": _w((lambda *s: torch.randn(*s, dtype=torch.bfloat16) * 0.4)(D, F) * (2.0 / D) ** 0.5),
            "W_down": _w((lambda *s: torch.randn(*s, dtype=torch.bfloat16) * 0.4)(F, D) * (1.0 / F) ** 0.5),
        }
    _B_in = _B_setup()

    return {
        "A_x": _A_in["x"],
        "A_k_cache": _A_in["k_cache"],
        "A_v_cache": _A_in["v_cache"],
        "A_wq": _A_in["wq"],
        "A_wo": _A_in["wo"],
        "B_x": _B_in["x"],
        "B_W_gate": _B_in["W_gate"],
        "B_W_up": _B_in["W_up"],
        "B_W_down": _B_in["W_down"],
    }

def reference(A_x, A_k_cache, A_v_cache, A_wq, A_wo, B_x, B_W_gate, B_W_up, B_W_down):
    def _A_ref(x, k_cache, v_cache, wq, wo):
        B, Sq, D = x.shape
        Hq, Dh = 32, 128
        Hkv = k_cache.shape[1]
        rep = Hq // Hkv
        q = (lambda x, *d: x.permute(*d))((x @ wq).reshape(B, Sq, Hq, Dh), 0, 2, 1, 3)
        k = (lambda x, n, axis: torch.repeat_interleave(x, n, dim=axis))(k_cache, rep, axis=1)
        v = (lambda x, n, axis: torch.repeat_interleave(x, n, dim=axis))(v_cache, rep, axis=1)
        scores = torch.einsum("bhqd,bhkd->bhqk", q, k) * (Dh ** -0.5)
        p = _softmax(scores, axis=-1)
        o = torch.einsum("bhqk,bhkd->bhqd", p, v)
        return (lambda x, *d: x.permute(*d))(o, 0, 2, 1, 3).reshape(B, Sq, Hq * Dh) @ wo

    def _B_ref(x, W_gate, W_up, W_down):
        gate = torch.einsum("bsd,df->bsf", x, W_gate)
        up = torch.einsum("bsd,df->bsf", x, W_up)
        gate = gate * (lambda x, dt: x.to(dt))(gate > 0, gate.dtype)
        h = gate * up
        return torch.einsum("bsf,fd->bsd", h, W_down)

    x = A_x
    xn = _layernorm(x, axis=-1)
    return x + _A_ref(xn, A_k_cache, A_v_cache, A_wq, A_wo) + _B_ref(xn, B_W_gate, B_W_up, B_W_down)
```

```python
import sys

NAME = "parallel_sum__gqa_block_cached__glu_gated_reglu__decode"
NSLOT = 12
NT = True
if len(sys.argv) > 1:
    for a in sys.argv[1:]:
        k, v = a.split("=")
        globals()[k] = eval(v)

out = []
def e(s): out.append("    " + s)
def lab(s): out.append(s + ":")
def c(s): out.append("    ; " + s)

vLANE = 1
vT0, vT1, vT2, vT3 = 2, 3, 4, 5
vU0, vU1 = 6, 7
vMX = 8
vKOFF = 9
vA0 = 10
vINV = 14
vNEGM = 15
vQ = 16
vMASK = 20
vACC = 24
vS = 28
vAA = 60
vAB = 68
vXN = 60
vRING = 76
vC = 124
vR = 125
vTMP = 126
vTMP2 = 127
def slot(i): return vRING + 4 * (i % NSLOT)
def vr(a, n): return "v[%d:%d]" % (a, a + n - 1)

sX, sK, sV, sWQ, sWO, sGATE, sUP, sDOWN, sOUT, sDBG, sWS = 16, 18, 20, 22, 24, 28, 30, 32, 34, 36, 38
sKSRD = 4
sVSRD = 8
sW = 12
sB = 13
sH = 14
sTMP = 15
sXN = 40
sOFF = 72
sT2 = 73
sT3 = 74
sT4 = 75
sLOG2E = 76
sHP = 77
sWQB = 78
sWOB = 80
sSLAB = 82
sEX = 84

L_XN = 0
L_QB = 2048
L_HB = 2304
L_ST = 2560
L_FLAG = 2688
L_OP = 3072
L_GU = 11264
L_QP = 19456
L_FIN = 52224
L_B = 117760
LDS_BYTES = 119808

issued = []
def issue(name): issued.append(name)
def wait_for(name):
    idx = issued.index(name)
    n = len(issued) - 1 - idx
    assert n <= 63
    e("s_waitcnt vmcnt(%d)" % n)

ntf = " nt" if NT else ""

stream = ["wq%d" % i for i in range(8)] + ["K%d" % i for i in range(64)] + ["V%d" % i for i in range(64)] \
         + ["wo%d" % i for i in range(8)] + ["wd%d" % i for i in range(3)]
sidx = {n: i for i, n in enumerate(stream)}
next_issue = [0]
def issue_next():
    i = next_issue[0]
    if i >= len(stream): return
    n = stream[i]; s = slot(i)
    next_issue[0] += 1
    if n.startswith("wq"):
        j = int(n[2:])
        e("global_load_dwordx4 %s, v%d, s[%d:%d]" % (vr(s, 4), vU0 if False else vWQOFF, sWQB, sWQB + 1))
        if j < 7:
            e("v_add_u32 v%d, 0x8000, v%d" % (vWQOFF, vWQOFF))
    elif n[0] == "K" or n[0] == "V":
        j = int(n[1:])
        srd = sKSRD if n[0] == "K" else sVSRD
        e("s_mov_b32 s%d, %d" % (sOFF, (j // 4) * 4096))
        e("buffer_load_dwordx4 %s, v%d, s[%d:%d], s%d offen offset:%d%s" % (vr(s, 4), vKOFF, srd, srd + 3, sOFF, (j % 4) * 1024, ntf))
    elif n.startswith("wo"):
        j = int(n[2:])
        e("global_load_dwordx4 %s, v%d, s[%d:%d] offset:%d" % (vr(s, 4), vWOFF, sWOB, sWOB + 1, j * 1024 if j < 4 else 0) if j < 4 else
          "global_load_dwordx4 %s, v%d, s[%d:%d] offset:%d" % (vr(s, 4), vWOFF2, sWOB, sWOB + 1, (j - 4) * 1024))
    elif n.startswith("wd"):
        j = int(n[2:])
        e("global_load_dwordx4 %s, v%d, s[%d:%d]" % (vr(s, 4), vWDOFF[j], sDOWN, sDOWN + 1))
    issue(n)

vWQOFF = vTMP
vWOFF = vTMP
vWOFF2 = vTMP2
vWDOFF = [vU0, vU1, vT0]

out.append("; @launch grid=(256,1,1) block=(1024,1,1) lds=%d" % LDS_BYTES)
out.append('.amdgcn_target "amdgcn-amd-amdhsa--gfx950"')
out.append(".text")
out.append(".globl %s_kernel" % NAME)
out.append(".p2align 8")
out.append(".type %s_kernel,@function" % NAME)
lab("%s_kernel" % NAME)
e("s_cmp_ge_u32 s2, 256")
e("s_cbranch_scc1 L_end")
e("s_load_dwordx16 s[16:31], s[0:1], 0")
e("s_load_dwordx8 s[32:39], s[0:1], 64")
e("v_and_b32 v%d, 63, v0" % vLANE)
e("v_lshrrev_b32 v%d, 6, v0" % vT0)
e("s_lshr_b32 s%d, s2, 5" % sB)
e("s_and_b32 s%d, s2, 31" % sH)
e("v_readfirstlane_b32 s%d, v%d" % (sW, vT0))
e("v_and_b32 v%d, 15, v%d" % (vC, vLANE))
e("v_lshrrev_b32 v%d, 4, v%d" % (vR, vLANE))
e("s_mov_b32 s%d, 0x3fb8aa3b" % sLOG2E)
e("s_and_b32 s%d, s%d, 1" % (sHP, sH))
e("s_waitcnt lgkmcnt(0)")
for srd, p in ((sKSRD, sK), (sVSRD, sV)):
    e("s_mov_b32 s%d, s%d" % (srd, p))
    e("s_and_b32 s%d, s%d, 0xffff" % (srd + 1, p + 1))
    e("s_mov_b32 s%d, 0x10000000" % (srd + 2))
    e("s_mov_b32 s%d, 0x00020000" % (srd + 3))
e("s_lshl_b32 s%d, s%d, 10" % (sTMP, sB))
e("v_lshlrev_b32 v%d, 4, v%d" % (vT1, vLANE))
e("v_add_u32 v%d, s%d, v%d" % (vT1, sTMP, vT1))
e("global_load_dwordx4 v[%d:%d], v%d, s[%d:%d]" % (vA0, vA0 + 3, vT1, sX, sX + 1))
issue("x")
e("s_lshl_b32 s%d, s%d, 8" % (sTMP, sH))
e("s_add_u32 s%d, s%d, s%d" % (sWQB, sWQ, sTMP))
e("s_addc_u32 s%d, s%d, 0" % (sWQB + 1, sWQ + 1))
e("s_lshl_b32 s%d, s%d, 18" % (sTMP, sW))
e("v_lshlrev_b32 v%d, 13, v%d" % (vWQOFF, vR))
e("v_lshl_add_u32 v%d, v%d, 4, v%d" % (vWQOFF, vC, vWQOFF))
e("v_add_u32 v%d, s%d, v%d" % (vWQOFF, sTMP, vWQOFF))
e("s_lshl_b32 s%d, s2, 20" % sTMP)
e("s_lshl_b32 s%d, s%d, 16" % (sT2, sW))
e("s_add_u32 s%d, s%d, s%d" % (sTMP, sTMP, sT2))
e("v_lshlrev_b32 v%d, 4, v%d" % (vKOFF, vLANE))
e("v_add_u32 v%d, s%d, v%d" % (vKOFF, sTMP, vKOFF))
for i in range(8):
    issue_next()
c("gate/up per-lane 64-bit addresses")
e("v_and_b32 v%d, 31, v%d" % (vT0, vLANE))
e("v_min_u32 v%d, 21, v%d" % (vT0, vT0))
e("v_lshlrev_b32 v%d, 2, v%d" % (vT0, vT0))
e("s_mul_i32 s%d, s%d, 86" % (sTMP, sH))
e("s_and_b32 s%d, s%d, -4" % (sTMP, sTMP))
e("s_mul_i32 s%d, s%d, %d" % (sT2, sW, 32 * 2752))
e("s_add_u32 s%d, s%d, s%d" % (sTMP, sTMP, sT2))
e("v_add_u32 v%d, s%d, v%d" % (vT0, sTMP, vT0))
e("v_mov_b32 v%d, s%d" % (vT2, sGATE))
e("v_mov_b32 v%d, s%d" % (vT3, sGATE + 1))
e("v_mov_b32 v%d, s%d" % (vU0, sUP))
e("v_mov_b32 v%d, s%d" % (vU1, sUP + 1))
e("v_cmp_gt_u32 vcc, 32, v%d" % vLANE)
e("s_nop 1")
e("v_cndmask_b32 v%d, v%d, v%d, vcc" % (vT2, vU0, vT2))
e("v_cndmask_b32 v%d, v%d, v%d, vcc" % (vT3, vU1, vT3))
e("v_add_co_u32 v%d, vcc, v%d, v%d" % (vT2, vT0, vT2))
e("s_nop 1")
e("v_addc_co_u32 v%d, vcc, 0, v%d, vcc" % (vT3, vT3))
for i in range(32):
    e("global_load_dword v%d, v[%d:%d], off" % (vS + i, vT2, vT3))
    issue("gu%d" % i)
    if i < 31:
        e("v_add_co_u32 v%d, vcc, 2752, v%d" % (vT2, vT2))
        e("s_nop 1")
        e("v_addc_co_u32 v%d, vcc, 0, v%d, vcc" % (vT3, vT3))
for i in range(NSLOT - 8):
    issue_next()

c("masks: mask_t = (c>>1==t && c<8) ? (c&1? 0xffff0000:0xffff) : 0")
e("v_and_b32 v%d, 1, v%d" % (vT0, vC))
e("v_cmp_eq_u32 vcc, 1, v%d" % vT0)
e("v_mov_b32 v%d, 0xffff" % vT1)
e("v_mov_b32 v%d, 0xffff0000" % vT2)
e("v_cndmask_b32 v%d, v%d, v%d, vcc" % (vT1, vT1, vT2))
e("v_lshrrev_b32 v%d, 1, v%d" % (vT0, vC))
for t in range(4):
    e("v_cmp_eq_u32 vcc, %d, v%d" % (t, vT0))
    e("s_nop 1")
    e("v_cndmask_b32 v%d, 0, v%d, vcc" % (vMASK + t, vT1))

c("layernorm (each wave redundantly)")
wait_for("x")
for j in range(4):
    e("v_lshlrev_b32 v%d, 16, v%d" % (vXN + 2 * j, vA0 + j))
    e("v_and_b32 v%d, 0xffff0000, v%d" % (vXN + 2 * j + 1, vA0 + j))
def wave_sum(v, sdst):
    for rot in (8, 4, 2, 1):
        e("s_nop 1")
        e("v_add_f32_dpp v%d, v%d, v%d row_ror:%d row_mask:0xf bank_mask:0xf" % (v, v, v, rot))
    e("s_nop 1")
    for k in range(4):
        e("v_readlane_b32 s%d, v%d, %d" % (sdst + k, v, 16 * k))
    e("s_nop 1")
    e("v_mov_b32 v%d, s%d" % (v, sdst))
    for k in range(1, 4):
        e("v_add_f32 v%d, s%d, v%d" % (v, sdst + k, v))
e("v_add_f32 v%d, v%d, v%d" % (vT0, vXN, vXN + 1))
for j in range(2, 8):
    e("v_add_f32 v%d, v%d, v%d" % (vT0, vT0, vXN + j))
wave_sum(vT0, sXN)
e("v_mul_f32 v%d, 0x3b000000, v%d" % (vT0, vT0))
e("v_sub_f32 v%d, v%d, v%d" % (vT2, vXN, vT0))
e("v_mul_f32 v%d, v%d, v%d" % (vT1, vT2, vT2))
for j in range(1, 8):
    e("v_sub_f32 v%d, v%d, v%d" % (vT2, vXN + j, vT0))
    e("v_fmac_f32 v%d, v%d, v%d" % (vT1, vT2, vT2))
wave_sum(vT1, sXN)
e("v_mul_f32 v%d, 0x3b000000, v%d" % (vT1, vT1))
e("v_cvt_pk_bf16_f32 v%d, v%d, v%d" % (vT2, vT0, vT1))
e("v_lshlrev_b32 v%d, 16, v%d" % (vT0, vT2))
e("v_and_b32 v%d, 0xffff0000, v%d" % (vT1, vT2))
e("v_add_f32 v%d, 0x3727c5ac, v%d" % (vT1, vT1))
e("v_cvt_pk_bf16_f32 v%d, v%d, v%d" % (vT1, vT1, vT1))
e("v_and_b32 v%d, 0xffff0000, v%d" % (vT1, vT1))
e("v_sqrt_f32 v%d, v%d" % (vT1, vT1))
e("s_nop 0")
e("v_cvt_pk_bf16_f32 v%d, v%d, v%d" % (vT1, vT1, vT1))
e("v_and_b32 v%d, 0xffff0000, v%d" % (vT1, vT1))
e("v_rcp_f32 v%d, v%d" % (vT2, vT1))
e("s_nop 0")
e("v_fma_f32 v%d, -v%d, v%d, 1.0" % (vT3, vT1, vT2))
e("v_fmac_f32 v%d, v%d, v%d" % (vT2, vT3, vT2))
for j in range(0, 8, 2):
    e("v_sub_f32 v%d, v%d, v%d" % (vXN + j, vXN + j, vT0))
    e("v_sub_f32 v%d, v%d, v%d" % (vXN + j + 1, vXN + j + 1, vT0))
    e("v_cvt_pk_bf16_f32 v%d, v%d, v%d" % (vT3, vXN + j, vXN + j + 1))
    e("v_lshlrev_b32 v%d, 16, v%d" % (vXN + j, vT3))
    e("v_and_b32 v%d, 0xffff0000, v%d" % (vXN + j + 1, vT3))
    e("v_mul_f32 v%d, v%d, v%d" % (vU0, vXN + j, vT2))
    e("v_mul_f32 v%d, v%d, v%d" % (vU1, vXN + j + 1, vT2))
    e("v_fma_f32 v%d, -v%d, v%d, v%d" % (vXN + j, vU0, vT1, vXN + j))
    e("v_fma_f32 v%d, -v%d, v%d, v%d" % (vXN + j + 1, vU1, vT1, vXN + j + 1))
    e("v_fmac_f32 v%d, v%d, v%d" % (vU0, vXN + j, vT2))
    e("v_fmac_f32 v%d, v%d, v%d" % (vU1, vXN + j + 1, vT2))
    e("v_cvt_pk_bf16_f32 v%d, v%d, v%d" % (vT3, vU0, vU1))
    e("v_lshlrev_b32 v%d, 16, v%d" % (vXN + j, vT3))
    e("v_and_b32 v%d, 0xffff0000, v%d" % (vXN + j + 1, vT3))
e("v_lshlrev_b32 v%d, 5, v%d" % (vT0, vLANE))
e("ds_write_b128 v%d, v[%d:%d] offset:%d" % (vT0, vXN, vXN + 3, L_XN))
e("ds_write_b128 v%d, v[%d:%d] offset:%d" % (vT0, vXN + 4, vXN + 7, L_XN + 16))
e("s_lshl_b32 s%d, s%d, 2" % (sTMP, sW))
for i4 in range(4):
    e("s_add_u32 s%d, s%d, %d" % (sT2, sTMP, i4))
    for j in range(8):
        e("v_readlane_b32 s%d, v%d, s%d" % (sXN + i4 * 8 + j, vXN + j, sT2))
e("s_waitcnt lgkmcnt(0)")
e("s_lshl_b32 s%d, s%d, 7" % (sTMP, sW))
e("v_lshlrev_b32 v%d, 2, v%d" % (vT0, vR))
e("v_add_u32 v%d, s%d, v%d" % (vT0, sTMP, vT0))
for i in range(8):
    e("ds_read_b32 v%d, v%d offset:%d" % (vAB + i, vT0, L_XN + i * 16))
e("s_waitcnt lgkmcnt(0)")
for i in range(8):
    wait_for("wq%d" % i)
    s = slot(sidx["wq%d" % i])
    for j in range(4):
        e("v_lshlrev_b32 v%d, 16, v%d" % (vU0, s + j))
        e("v_and_b32 v%d, 0xffff0000, v%d" % (vU1, s + j))
        if i == 0:
            e("v_mul_f32 v%d, v%d, v%d" % (vXN + 2 * j, vU0, vAB + i))
            e("v_mul_f32 v%d, v%d, v%d" % (vXN + 2 * j + 1, vU1, vAB + i))
        else:
            e("v_fmac_f32 v%d, v%d, v%d" % (vXN + 2 * j, vU0, vAB + i))
            e("v_fmac_f32 v%d, v%d, v%d" % (vXN + 2 * j + 1, vU1, vAB + i))
    issue_next()
e("s_lshl_b32 s%d, s%d, 11" % (sTMP, sW))
e("v_lshlrev_b32 v%d, 9, v%d" % (vT0, vR))
e("v_lshl_add_u32 v%d, v%d, 5, v%d" % (vT0, vC, vT0))
e("v_add_u32 v%d, s%d, v%d" % (vT0, sTMP, vT0))
e("ds_write_b128 v%d, v[%d:%d] offset:%d" % (vT0, vXN, vXN + 3, L_QP))
e("ds_write_b128 v%d, v[%d:%d] offset:%d" % (vT0, vXN + 4, vXN + 7, L_QP + 16))
for i in range(32):
    if i % 8 == 0:
        wait_for("gu%d" % (i + 7))
    e("v_lshlrev_b32 v%d, 16, v%d" % (vU0, vS + i))
    e("v_and_b32 v%d, 0xffff0000, v%d" % (vU1, vS + i))
    if i == 0:
        e("v_mul_f32 v%d, s%d, v%d" % (vT2, sXN + i, vU0))
        e("v_mul_f32 v%d, s%d, v%d" % (vT3, sXN + i, vU1))
    else:
        e("v_fmac_f32 v%d, s%d, v%d" % (vT2, sXN + i, vU0))
        e("v_fmac_f32 v%d, s%d, v%d" % (vT3, sXN + i, vU1))
e("s_lshl_b32 s%d, s%d, 9" % (sTMP, sW))
e("v_lshlrev_b32 v%d, 3, v%d" % (vT0, vLANE))
e("v_add_u32 v%d, s%d, v%d" % (vT0, sTMP, vT0))
e("ds_write_b64 v%d, v[%d:%d] offset:%d" % (vT0, vT2, vT3, L_GU))
e("s_waitcnt lgkmcnt(0)")
e("s_barrier")
e("s_cmp_gt_u32 s%d, 2" % sW)
e("s_cbranch_scc1 L_st2_done")
e("s_cmp_eq_u32 s%d, 2" % sW)
e("s_cbranch_scc1 L_st2_gu")
c("waves 0,1: q sum over 64 partials")
e("v_lshlrev_b32 v%d, 2, v0" % vT0)
for k in range(64):
    if k % 16 == 0:
        pass
    e("ds_read_b32 v%d, v%d offset:%d" % (vS + (k % 16), vT0, L_QP + k * 512))
    if k % 16 == 15:
        e("s_waitcnt lgkmcnt(0)")
        for j in range(16):
            if k == 15 and j == 0:
                e("v_mov_b32 v%d, v%d" % (vT1, vS))
            else:
                e("v_add_f32 v%d, v%d, v%d" % (vT1, vT1, vS + j))
e("v_cvt_pk_bf16_f32 v%d, v%d, v%d" % (vT1, vT1, vT1))
e("v_lshlrev_b32 v%d, 1, v0" % vT0)
e("ds_write_b16 v%d, v%d offset:%d" % (vT0, vT1, L_QB))
e("s_branch L_st2_done")
lab("L_st2_gu")
c("wave 2: gate/up sums")
e("v_lshlrev_b32 v%d, 2, v%d" % (vT0, vLANE))
for k in range(16):
    e("ds_read_b32 v%d, v%d offset:%d" % (vS + k, vT0, L_GU + k * 512))
    e("ds_read_b32 v%d, v%d offset:%d" % (vS + 16 + k, vT0, L_GU + k * 512 + 256))
e("s_waitcnt lgkmcnt(0)")
e("v_mov_b32 v%d, v%d" % (vT1, vS))
e("v_mov_b32 v%d, v%d" % (vT2, vS + 16))
for k in range(1, 16):
    e("v_add_f32 v%d, v%d, v%d" % (vT1, vT1, vS + k))
    e("v_add_f32 v%d, v%d, v%d" % (vT2, vT2, vS + 16 + k))
e("v_cvt_pk_bf16_f32 v%d, v%d, v%d" % (vT3, vT1, vT2))
e("v_lshlrev_b32 v%d, 16, v%d" % (vT1, vT3))
e("v_and_b32 v%d, 0xffff0000, v%d" % (vT2, vT3))
e("v_max_f32 v%d, 0, v%d" % (vT1, vT1))
e("v_mul_f32 v%d, v%d, v%d" % (vT1, vT1, vT2))
e("v_cvt_pk_bf16_f32 v%d, v%d, v%d" % (vT1, vT1, vT1))
e("v_and_b32 v%d, 0xffff0000, v%d" % (vT1, vT1))
e("ds_write_b32 v%d, v%d offset:%d" % (vT0, vT1, L_HB))
lab("L_st2_done")
e("s_waitcnt lgkmcnt(0)")
e("s_barrier")
e("v_lshlrev_b32 v%d, 4, v%d" % (vT0, vC))
e("ds_read_b128 v[%d:%d], v%d offset:%d" % (vQ, vQ + 3, vT0, L_QB))
e("v_mov_b32 v%d, 0xff800000" % vMX)
e("s_waitcnt lgkmcnt(0)")

c("phase 1")
for g in range(16):
    regs = [vT0, vT1, vT2, vT3]
    for u in range(4):
        i = 4 * g + u
        wait_for("K%d" % i)
        s = slot(sidx["K%d" % i])
        e("v_dot2_f32_bf16 v%d, v%d, v%d, 0" % (regs[u], s, vQ))
        for j in range(1, 4):
            e("v_dot2_f32_bf16 v%d, v%d, v%d, v%d" % (regs[u], s + j, vQ + j, regs[u]))
        issue_next()
    for rot in (8, 4, 2, 1):
        for u in range(4):
            e("v_add_f32_dpp v%d, v%d, v%d row_ror:%d row_mask:0xf bank_mask:0xf" % (regs[u], regs[u], regs[u], rot))
    e("v_cvt_pk_bf16_f32 v%d, v%d, v%d" % (vU0, vT0, vT1))
    e("v_cvt_pk_bf16_f32 v%d, v%d, v%d" % (vU1, vT2, vT3))
    e("v_lshlrev_b32 v%d, 16, v%d" % (vT0, vU0))
    e("v_and_b32 v%d, 0xffff0000, v%d" % (vT1, vU0))
    e("v_lshlrev_b32 v%d, 16, v%d" % (vT2, vU1))
    e("v_and_b32 v%d, 0xffff0000, v%d" % (vT3, vU1))
    for u in range(4):
        e("v_mul_f32 v%d, 0x3db504f3, v%d" % (regs[u], regs[u]))
    e("v_cvt_pk_bf16_f32 v%d, v%d, v%d" % (vS + 2 * g, vT0, vT1))
    e("v_cvt_pk_bf16_f32 v%d, v%d, v%d" % (vS + 2 * g + 1, vT2, vT3))
    e("v_lshlrev_b32 v%d, 16, v%d" % (vT0, vS + 2 * g))
    e("v_and_b32 v%d, 0xffff0000, v%d" % (vT1, vS + 2 * g))
    e("v_lshlrev_b32 v%d, 16, v%d" % (vT2, vS + 2 * g + 1))
    e("v_and_b32 v%d, 0xffff0000, v%d" % (vT3, vS + 2 * g + 1))
    e("v_max3_f32 v%d, v%d, v%d, v%d" % (vMX, vT0, vT1, vMX))
    e("v_max3_f32 v%d, v%d, v%d, v%d" % (vMX, vT2, vT3, vMX))

c("wave-local max")
e("s_nop 1")
for k in range(4):
    e("v_readlane_b32 s%d, v%d, %d" % (sXN + k, vMX, 16 * k))
e("s_nop 1")
e("v_mov_b32 v%d, s%d" % (vMX, sXN))
for k in range(1, 4):
    e("v_max_f32 v%d, s%d, v%d" % (vMX, sXN + k, vMX))
e("v_mul_f32 v%d, s%d, v%d" % (vNEGM, sLOG2E, vMX))
e("v_sub_f32 v%d, 0, v%d" % (vNEGM, vNEGM))
e("v_mov_b32 v%d, 0" % vU0)
for k in range(32):
    e("v_lshlrev_b32 v%d, 16, v%d" % (vT0, vS + k))
    e("v_and_b32 v%d, 0xffff0000, v%d" % (vT1, vS + k))
    e("v_fma_f32 v%d, v%d, s%d, v%d" % (vT0, vT0, sLOG2E, vNEGM))
    e("v_fma_f32 v%d, v%d, s%d, v%d" % (vT1, vT1, sLOG2E, vNEGM))
    e("v_exp_f32 v%d, v%d" % (vT0, vT0))
    e("v_exp_f32 v%d, v%d" % (vT1, vT1))
    e("s_nop 0")
    e("v_add_f32 v%d, v%d, v%d" % (vU0, vU0, vT0))
    e("v_add_f32 v%d, v%d, v%d" % (vU0, vU0, vT1))
e("s_nop 1")
for k in range(4):
    e("v_readlane_b32 s%d, v%d, %d" % (sXN + k, vU0, 16 * k))
e("s_nop 1")
e("v_mov_b32 v%d, s%d" % (vU0, sXN))
for k in range(1, 4):
    e("v_add_f32 v%d, s%d, v%d" % (vU0, sXN + k, vU0))
e("s_lshl_b32 s%d, s%d, 3" % (sTMP, sW))
e("v_mov_b32 v%d, s%d" % (vT0, sTMP))
e("v_mov_b32 v%d, v%d" % (vU1, vU0))
e("v_mov_b32 v%d, v%d" % (vU0, vMX))
e("ds_write_b64 v%d, v[%d:%d] offset:%d" % (vT0, vU0, vU1, L_ST))
e("s_waitcnt lgkmcnt(0)")
e("s_barrier")
e("v_mov_b32 v%d, 0" % vT0)
for k in range(8):
    e("ds_read_b128 v[%d:%d], v%d offset:%d" % (vAA + 4 * (k % 4), vAA + 4 * (k % 4) + 3, vT0, L_ST + k * 16))
    if k % 4 == 3:
        e("s_waitcnt lgkmcnt(0)")
        if k == 3:
            e("v_max3_f32 v%d, v%d, v%d, v%d" % (vMX, vAA, vAA + 2, vAA + 4))
            e("v_max3_f32 v%d, v%d, v%d, v%d" % (vMX, vAA + 6, vAA + 8, vMX))
            e("v_max3_f32 v%d, v%d, v%d, v%d" % (vMX, vAA + 10, vAA + 12, vMX))
            e("v_max_f32 v%d, v%d, v%d" % (vMX, vAA + 14, vMX))
        else:
            e("v_max3_f32 v%d, v%d, v%d, v%d" % (vMX, vAA, vAA + 2, vMX))
            e("v_max3_f32 v%d, v%d, v%d, v%d" % (vMX, vAA + 4, vAA + 6, vMX))
            e("v_max3_f32 v%d, v%d, v%d, v%d" % (vMX, vAA + 8, vAA + 10, vMX))
            e("v_max3_f32 v%d, v%d, v%d, v%d" % (vMX, vAA + 12, vAA + 14, vMX))
e("v_mul_f32 v%d, s%d, v%d" % (vNEGM, sLOG2E, vMX))
e("v_sub_f32 v%d, 0, v%d" % (vNEGM, vNEGM))
e("v_mov_b32 v%d, 0" % vINV)
for k in range(8):
    e("ds_read_b128 v[%d:%d], v%d offset:%d" % (vAA + 4 * (k % 4), vAA + 4 * (k % 4) + 3, vT0, L_ST + k * 16))
    if k % 4 == 3:
        e("s_waitcnt lgkmcnt(0)")
        for j in range(8):
            e("v_fma_f32 v%d, v%d, s%d, v%d" % (vT1, vAA + 2 * j, sLOG2E, vNEGM))
            e("v_exp_f32 v%d, v%d" % (vT1, vT1))
            e("s_nop 0")
            e("v_fmac_f32 v%d, v%d, v%d" % (vINV, vT1, vAA + 2 * j + 1))
e("v_rcp_f32 v%d, v%d" % (vT1, vINV))
e("s_nop 0")
e("v_fma_f32 v%d, -v%d, v%d, 1.0" % (vT2, vINV, vT1))
e("v_fma_f32 v%d, v%d, v%d, v%d" % (vINV, vT2, vT1, vT1))
for t in range(4):
    e("v_mov_b32 v%d, 0" % (vACC + t))
e("s_lshl_b32 s%d, s%d, 17" % (sTMP, sH))
e("s_add_u32 s%d, s%d, s%d" % (sWOB, sWO, sTMP))
e("s_addc_u32 s%d, s%d, 0" % (sWOB + 1, sWO + 1))
e("s_lshl_b32 s%d, s%d, 13" % (sTMP, sW))
e("v_lshlrev_b32 v%d, 4, v%d" % (vWOFF, vLANE))
e("v_add_u32 v%d, s%d, v%d" % (vWOFF, sTMP, vWOFF))
e("v_add_u32 v%d, 0x1000, v%d" % (vWOFF2, vWOFF))

c("phase 2")
def p_ops(i, t, areg):
    k = i // 2
    if i % 2 == 0:
        e("v_lshlrev_b32 v%d, 16, v%d" % (t, vS + k))
    else:
        e("v_and_b32 v%d, 0xffff0000, v%d" % (t, vS + k))
    e("v_fma_f32 v%d, v%d, s%d, v%d" % (t, t, sLOG2E, vNEGM))
    e("v_exp_f32 v%d, v%d" % (t, t))
for i in range(0, 64, 2):
    if i == 52:
        e("s_mul_i32 s%d, s%d, 43" % (sTMP, sH))
        e("s_add_u32 s%d, s%d, s%d" % (sTMP, sTMP, sW))
        e("s_add_u32 s%d, s%d, 32" % (sT2, sW))
        e("s_min_u32 s%d, s%d, 42" % (sT2, sT2))
        e("s_mul_i32 s%d, s%d, 43" % (sT3, sH))
        e("s_add_u32 s%d, s%d, s%d" % (sT2, sT2, sT3))
        e("s_lshl_b32 s%d, s%d, 10" % (sTMP, sTMP))
        e("s_lshl_b32 s%d, s%d, 10" % (sT2, sT2))
    p_ops(i, vT0, None)
    p_ops(i + 1, vT1, None)
    e("v_mul_f32 v%d, v%d, v%d" % (vT0, vT0, vINV))
    e("v_mul_f32 v%d, v%d, v%d" % (vT1, vT1, vINV))
    e("v_cvt_pk_bf16_f32 v%d, v%d, v%d" % (vT0, vT0, vT0))
    e("v_cvt_pk_bf16_f32 v%d, v%d, v%d" % (vT1, vT1, vT1))
    for u, t in ((0, vT0), (1, vT1)):
        for m in range(4):
            e("v_and_b32 v%d, v%d, v%d" % (vA0 + m, vMASK + m, t))
        wait_for("V%d" % (i + u))
        e("s_nop 0")
        s = slot(sidx["V%d" % (i + u)])
        e("v_mfma_f32_16x16x32_bf16 v[%d:%d], v[%d:%d], v[%d:%d], v[%d:%d]" % (vACC, vACC + 3, vA0, vA0 + 3, s, s + 3, vACC, vACC + 3))
        nxt = stream[next_issue[0]] if next_issue[0] < len(stream) else None
        if nxt is not None and nxt.startswith("wd"):
            j = int(nxt[2:])
            lanesh = vT2
            e("v_lshlrev_b32 v%d, 4, v%d" % (vT2, vLANE))
            if j == 0:
                e("v_add_u32 v%d, s%d, v%d" % (vWDOFF[0], sTMP, vT2))
            elif j == 1:
                e("v_add_u32 v%d, s%d, v%d" % (vWDOFF[1], sTMP, vT2))
                e("v_add_u32 v%d, 0x4000, v%d" % (vWDOFF[1], vWDOFF[1]))
            else:
                e("v_add_u32 v%d, s%d, v%d" % (vT3, sT2, vT2))
                vWDOFF[2] = vT3
        issue_next()
while next_issue[0] < len(stream):
    raise Exception("stream not fully issued")

c("o partial -> LDS")
e("s_nop 7")
e("s_nop 1")
e("v_lshlrev_b32 v%d, 4, v%d" % (vT0, vR))
e("v_lshl_add_u32 v%d, v%d, 5, v%d" % (vT0, vC, vT0))
e("s_lshl_b32 s%d, s%d, 9" % (sTMP, sW))
e("v_add_u32 v%d, s%d, v%d" % (vT0, sTMP, vT0))
e("v_cmp_gt_u32 vcc, 32, v%d" % vLANE)
e("s_and_saveexec_b64 s[%d:%d], vcc" % (sEX, sEX + 1))
e("ds_write_b128 v%d, v[%d:%d] offset:%d" % (vT0, vACC, vACC + 3, L_OP))
e("s_mov_b64 exec, s[%d:%d]" % (sEX, sEX + 1))
e("s_waitcnt lgkmcnt(0)")
e("s_barrier")
e("v_and_b32 v%d, 7, v%d" % (vT0, vLANE))
e("v_lshlrev_b32 v%d, 2, v%d" % (vT0, vT0))
e("s_lshl_b32 s%d, s%d, 5" % (sTMP, sW))
e("v_add_u32 v%d, s%d, v%d" % (vT0, sTMP, vT0))
for k in range(16):
    e("ds_read_b32 v%d, v%d offset:%d" % (vS + k, vT0, L_OP + k * 512))
e("s_add_u32 s%d, s%d, s%d" % (sTMP, sW, sHP))
e("s_lshl_b32 s%d, s%d, 2" % (sTMP, sTMP))
e("v_mov_b32 v%d, s%d" % (vT1, sTMP))
e("ds_read_b32 v%d, v%d offset:%d" % (vS + 16, vT1, L_HB))
e("ds_read_b32 v%d, v%d offset:%d" % (vS + 17, vT1, L_HB + 64))
e("ds_read_b32 v%d, v%d offset:%d" % (vS + 18, vT1, L_HB + 128))
e("s_waitcnt lgkmcnt(0)")
e("v_mov_b32 v%d, v%d" % (vT1, vS))
for k in range(1, 16):
    e("v_add_f32 v%d, v%d, v%d" % (vT1, vT1, vS + k))
e("v_cvt_pk_bf16_f32 v%d, v%d, v%d" % (vT1, vT1, vT1))
e("v_and_b32 v%d, 0xffff0000, v%d" % (vT1, vT1))
e("s_nop 1")
for j in range(8):
    e("v_readlane_b32 s%d, v%d, %d" % (sXN + j, vT1, j))
for j in range(3):
    e("v_readfirstlane_b32 s%d, v%d" % (sXN + 8 + j, vS + 16 + j))
e("s_cmp_ge_u32 s%d, 11" % sW)
e("s_cselect_b32 s%d, 0, s%d" % (sXN + 10, sXN + 10))
for j in range(8):
    wait_for("wo%d" % j)
    s = slot(sidx["wo%d" % j])
    for q in range(4):
        e("v_lshlrev_b32 v%d, 16, v%d" % (vU0, s + q))
        e("v_and_b32 v%d, 0xffff0000, v%d" % (vU1, s + q))
        if j == 0:
            e("v_mul_f32 v%d, s%d, v%d" % (vAA + 2 * q, sXN + j, vU0))
            e("v_mul_f32 v%d, s%d, v%d" % (vAA + 2 * q + 1, sXN + j, vU1))
        else:
            e("v_fmac_f32 v%d, s%d, v%d" % (vAA + 2 * q, sXN + j, vU0))
            e("v_fmac_f32 v%d, s%d, v%d" % (vAA + 2 * q + 1, sXN + j, vU1))
for j in range(3):
    wait_for("wd%d" % j)
    s = slot(sidx["wd%d" % j])
    for q in range(4):
        e("v_lshlrev_b32 v%d, 16, v%d" % (vU0, s + q))
        e("v_and_b32 v%d, 0xffff0000, v%d" % (vU1, s + q))
        if j == 0:
            e("v_mul_f32 v%d, s%d, v%d" % (vAB + 2 * q, sXN + 8 + j, vU0))
            e("v_mul_f32 v%d, s%d, v%d" % (vAB + 2 * q + 1, sXN + 8 + j, vU1))
        else:
            e("v_fmac_f32 v%d, s%d, v%d" % (vAB + 2 * q, sXN + 8 + j, vU0))
            e("v_fmac_f32 v%d, s%d, v%d" % (vAB + 2 * q + 1, sXN + 8 + j, vU1))
e("s_lshl_b32 s%d, s%d, 12" % (sTMP, sW))
e("v_lshlrev_b32 v%d, 5, v%d" % (vT0, vLANE))
e("v_add_u32 v%d, s%d, v%d" % (vT0, sTMP, vT0))
e("v_add_u32 v%d, %d, v%d" % (vT0, L_FIN, vT0))
e("ds_write_b128 v%d, v[%d:%d] offset:%d" % (vT0, vAA, vAA + 3, 0))
e("ds_write_b128 v%d, v[%d:%d] offset:%d" % (vT0, vAA + 4, vAA + 7, 16))
e("ds_write_b128 v%d, v[%d:%d] offset:%d" % (vT0, vAB, vAB + 3, 2048))
e("ds_write_b128 v%d, v[%d:%d] offset:%d" % (vT0, vAB + 4, vAB + 7, 2064))
e("s_waitcnt lgkmcnt(0)")
e("s_barrier")
e("v_lshlrev_b32 v%d, 2, v0" % vT0)
e("v_add_u32 v%d, %d, v%d" % (vT2, L_FIN, vT0))
for k in range(16):
    e("ds_read_b32 v%d, v%d offset:%d" % (vS + k, vT2, k * 4096))
e("s_waitcnt lgkmcnt(0)")
e("v_mov_b32 v%d, v%d" % (vT1, vS))
for k in range(1, 16):
    e("v_add_f32 v%d, v%d, v%d" % (vT1, vT1, vS + k))
e("s_lshl_b32 s%d, s2, 12" % sTMP)
e("s_add_u32 s%d, s%d, s%d" % (sSLAB, sWS, sTMP))
e("s_addc_u32 s%d, s%d, 0" % (sSLAB + 1, sWS + 1))
e("global_store_dword v%d, v%d, s[%d:%d] sc0 sc1" % (vT0, vT1, sSLAB, sSLAB + 1))
e("s_waitcnt vmcnt(0)")
e("s_barrier")
e("s_cmp_lg_u32 s%d, 0" % sW)
e("s_cbranch_scc1 L_cnt_done")
e("s_lshl_b32 s%d, s%d, 5" % (sTMP, sB))
e("v_mov_b32 v%d, s%d" % (vT0, sTMP))
e("v_mov_b32 v%d, 1" % vT1)
e("v_cmp_eq_u32 vcc, 0, v%d" % vLANE)
e("s_and_saveexec_b64 s[%d:%d], vcc" % (sEX, sEX + 1))
e("global_atomic_add v%d, v%d, v%d, s[%d:%d] sc0 sc1" % (vT2, vT0, vT1, sDBG, sDBG + 1))
e("s_waitcnt vmcnt(0)")
e("v_mov_b32 v%d, 0" % vT0)
e("ds_write_b32 v%d, v%d offset:%d" % (vT0, vT2, L_FLAG))
e("s_mov_b64 exec, s[%d:%d]" % (sEX, sEX + 1))
e("s_waitcnt lgkmcnt(0)")
lab("L_cnt_done")
e("s_barrier")
e("v_mov_b32 v%d, 0" % vT0)
e("ds_read_b32 v%d, v%d offset:%d" % (vT1, vT0, L_FLAG))
e("s_waitcnt lgkmcnt(0)")
e("v_readfirstlane_b32 s%d, v%d" % (sTMP, vT1))
e("s_cmp_lg_u32 s%d, 31" % sTMP)
e("s_cbranch_scc1 L_end")
c("last workgroup of this batch: final reduce")
e("s_lshl_b32 s%d, s%d, 17" % (sTMP, sB))
e("s_add_u32 s%d, s%d, s%d" % (sSLAB, sWS, sTMP))
e("s_addc_u32 s%d, s%d, 0" % (sSLAB + 1, sWS + 1))
e("v_lshlrev_b32 v%d, 2, v0" % vT0)
for k in range(32):
    e("global_load_dword v%d, v%d, s[%d:%d] sc0 sc1" % (vS + k, vT0, sSLAB, sSLAB + 1))
    if k < 31:
        e("v_add_u32 v%d, 0x1000, v%d" % (vT0, vT0))
e("v_and_b32 v%d, 511, v0" % vT2)
e("v_lshlrev_b32 v%d, 1, v%d" % (vT2, vT2))
e("s_lshl_b32 s%d, s%d, 10" % (sTMP, sB))
e("v_add_u32 v%d, s%d, v%d" % (vT2, sTMP, vT2))
e("global_load_ushort v%d, v%d, s[%d:%d]" % (vT3, vT2, sX, sX + 1))
e("s_waitcnt vmcnt(0)")
e("v_mov_b32 v%d, v%d" % (vT1, vS))
for k in range(1, 32):
    e("v_add_f32 v%d, v%d, v%d" % (vT1, vT1, vS + k))
e("v_cvt_pk_bf16_f32 v%d, v%d, v%d" % (vT1, vT1, vT1))
e("v_and_b32 v%d, 0xffff0000, v%d" % (vT1, vT1))
e("v_and_b32 v%d, 511, v0" % vT0)
e("v_lshlrev_b32 v%d, 2, v%d" % (vT0, vT0))
e("v_add_u32 v%d, %d, v%d" % (vT0, L_B, vT0))
e("s_cmp_lt_u32 s%d, 8" % sW)
e("s_cbranch_scc1 L_fa")
e("ds_write_b32 v%d, v%d" % (vT0, vT1))
e("s_waitcnt lgkmcnt(0)")
lab("L_fa")
e("s_barrier")
e("s_cmp_ge_u32 s%d, 8" % sW)
e("s_cbranch_scc1 L_end")
e("ds_read_b32 v%d, v%d" % (vU0, vT0))
e("v_lshlrev_b32 v%d, 16, v%d" % (vT3, vT3))
e("v_add_f32 v%d, v%d, v%d" % (vT1, vT3, vT1))
e("v_cvt_pk_bf16_f32 v%d, v%d, v%d" % (vT1, vT1, vT1))
e("v_and_b32 v%d, 0xffff0000, v%d" % (vT1, vT1))
e("s_waitcnt lgkmcnt(0)")
e("v_add_f32 v%d, v%d, v%d" % (vT1, vT1, vU0))
e("v_cvt_pk_bf16_f32 v%d, v%d, v%d" % (vT1, vT1, vT1))
e("global_store_short v%d, v%d, s[%d:%d]" % (vT2, vT1, sOUT, sOUT + 1))
lab("L_end")
e("s_endpgm")
out.append('.section .rodata,"a"')
out.append(".p2align 6")
out.append(".amdhsa_kernel %s_kernel" % NAME)
out.append("  .amdhsa_next_free_vgpr 128")
out.append("  .amdhsa_next_free_sgpr 96")
out.append("  .amdhsa_accum_offset 128")
out.append("  .amdhsa_group_segment_fixed_size 0")
out.append("  .amdhsa_kernarg_size 96")
out.append("  .amdhsa_user_sgpr_count 2")
out.append("  .amdhsa_user_sgpr_kernarg_segment_ptr 1")
out.append("  .amdhsa_system_sgpr_workgroup_id_x 1")
out.append(".end_amdhsa_kernel")
print("\n".join(out))
```

```python
import sys

NAME = "parallel_sum__gqa_block_cached__glu_gated_reglu__decode"
NSLOT = 12
NT = True
DIAG = False
ILV = 0
for a in sys.argv[1:]:
    k, v = a.split("=")
    globals()[k] = eval(v)

out = []
def e(s): out.append("    " + s)
def lab(s): out.append(s + ":")
def c(s): out.append("    ; " + s)

vLANE = 1
vT0, vT1, vT2, vT3 = 2, 3, 4, 5
vU0, vU1 = 6, 7
vMX = 8
vKOFF = 9
vA0 = 10
vINV = 14
vNEGM = 15
vQ = 16
vMASK = 20
vACC = 24
vS = 28
vAA = 60
vAB = 68
vXN = 60
vRING = 76
vC = 124
vR = 125
vTMP = 126
vTMP2 = 127
def slot(i): return vRING + 4 * (i % NSLOT)
def vr(a, n): return "v[%d:%d]" % (a, a + n - 1)

sX, sK, sV, sWQ, sWO, sGATE, sUP, sDOWN, sOUT, sDBG, sWS = 16, 18, 20, 22, 24, 28, 30, 32, 34, 36, 38
sKSRD = 4
sVSRD = 8
sW = 12
sB = 13
sH = 14
sTMP = 15
sXN = 40
sOFF = 72
sT2 = 73
sT3 = 74
sT4 = 75
sLOG2E = 76
sHP = 77
sWQB = 78
sWOB = 80
sSLAB = 82
sEX = 84

L_XN = 0
L_QB = 2048
L_HB = 2304
L_ST = 2560
L_FLAG = 2688
L_CNT = 2692
L_RDY = 2696
L_OP = 3072
L_GU = 11264
L_QP = 19456
L_FIN = 52224
L_B = 117760
LDS_BYTES = 119808

issued = []
def issue(name): issued.append(name)
def wait_for(name):
    idx = issued.index(name)
    n = len(issued) - 1 - idx
    assert n <= 63
    e("s_waitcnt vmcnt(%d)" % n)

ntf = " nt" if NT else ""
stampn = [0]
def stamp():
    if not DIAG: return
    k = stampn[0]; stampn[0] += 1
    e("s_memrealtime s[86:87]")
    e("s_waitcnt lgkmcnt(0)")
    e("s_mov_b32 s%d, s86" % (88 + k))

stream = ["K%d" % i for i in range(64)] + ["V%d" % i for i in range(64)] \
         + ["wo%d" % i for i in range(8)] + ["wd%d" % i for i in range(3)]
sidx = {n: i for i, n in enumerate(stream)}
next_issue = [0]
vWQOFF = vTMP
vWOFF = vTMP
vWOFF2 = vTMP2
vWDOFF = [vU0, vU1, vT3]
def issue_next():
    i = next_issue[0]
    if i >= len(stream): return
    n = stream[i]; s = slot(i)
    next_issue[0] += 1
    if n[0] == "K" or n[0] == "V":
        j = int(n[1:])
        srd = sKSRD if n[0] == "K" else sVSRD
        if ILV == 1:
            e("s_mov_b32 s%d, %d" % (sOFF, j * 16384))
            e("buffer_load_dwordx4 %s, v%d, s[%d:%d], s%d offen%s" % (vr(s, 4), vKOFF, srd, srd + 3, sOFF, ntf))
        elif ILV == 2:
            e("s_mov_b32 s%d, %d" % (sOFF, (j // 4) * 65536))
            e("buffer_load_dwordx4 %s, v%d, s[%d:%d], s%d offen offset:%d%s" % (vr(s, 4), vKOFF, srd, srd + 3, sOFF, (j % 4) * 1024, ntf))
        else:
            e("s_mov_b32 s%d, %d" % (sOFF, (j // 4) * 4096))
            e("buffer_load_dwordx4 %s, v%d, s[%d:%d], s%d offen offset:%d%s" % (vr(s, 4), vKOFF, srd, srd + 3, sOFF, (j % 4) * 1024, ntf))
    elif n.startswith("wo"):
        j = int(n[2:])
        e("global_load_dwordx4 %s, v%d, s[%d:%d] offset:%d" % (vr(s, 4), vWOFF if j < 4 else vWOFF2, sWOB, sWOB + 1, (j % 4) * 1024))
    elif n.startswith("wd"):
        j = int(n[2:])
        e("global_load_dwordx4 %s, v%d, s[%d:%d]" % (vr(s, 4), vWDOFF[j], sDOWN, sDOWN + 1))
    issue(n)

def gureg(i): return vS + 16 + i if i < 16 else vAA + (i - 16)
def wqreg(j): return slot(j) if j < 12 else vS + 4 * (j - 12)

def emit_gu_loads():
    c("gate/up loads: lane (sel=l/32, dw=min(l%32,21))")
    e("v_and_b32 v%d, 31, v%d" % (vT0, vLANE))
    e("v_min_u32 v%d, 21, v%d" % (vT0, vT0))
    e("v_lshlrev_b32 v%d, 2, v%d" % (vT0, vT0))
    e("s_mul_i32 s%d, s%d, 86" % (sTMP, sH))
    e("s_and_b32 s%d, s%d, -4" % (sTMP, sTMP))
    e("s_mul_i32 s%d, s%d, %d" % (sT2, sW, 32 * 2752))
    e("s_add_u32 s%d, s%d, s%d" % (sTMP, sTMP, sT2))
    e("v_add_u32 v%d, s%d, v%d" % (vT0, sTMP, vT0))
    e("v_mov_b32 v%d, s%d" % (vT2, sGATE))
    e("v_mov_b32 v%d, s%d" % (vT3, sGATE + 1))
    e("v_mov_b32 v%d, s%d" % (vU0, sUP))
    e("v_mov_b32 v%d, s%d" % (vU1, sUP + 1))
    e("v_cmp_gt_u32 vcc, 32, v%d" % vLANE)
    e("s_nop 1")
    e("v_cndmask_b32 v%d, v%d, v%d, vcc" % (vT2, vU0, vT2))
    e("v_cndmask_b32 v%d, v%d, v%d, vcc" % (vT3, vU1, vT3))
    e("v_add_co_u32 v%d, vcc, v%d, v%d" % (vT2, vT0, vT2))
    e("s_nop 1")
    e("v_addc_co_u32 v%d, vcc, 0, v%d, vcc" % (vT3, vT3))
    for i in range(32):
        e("global_load_dword v%d, v[%d:%d], off" % (gureg(i), vT2, vT3))
        issue("gu%d" % i)
        if i < 31:
            e("v_add_co_u32 v%d, vcc, 2752, v%d" % (vT2, vT2))
            e("s_nop 1")
            e("v_addc_co_u32 v%d, vcc, 0, v%d, vcc" % (vT3, vT3))

def wave_sum(v, sdst):
    for rot in (8, 4, 2, 1):
        e("s_nop 1")
        e("v_add_f32_dpp v%d, v%d, v%d row_ror:%d row_mask:0xf bank_mask:0xf" % (v, v, v, rot))
    e("s_nop 1")
    for k in range(4):
        e("v_readlane_b32 s%d, v%d, %d" % (sdst + k, v, 16 * k))
    e("s_nop 1")
    e("v_mov_b32 v%d, s%d" % (v, sdst))
    for k in range(1, 4):
        e("v_add_f32 v%d, s%d, v%d" % (v, sdst + k, v))

out.append("; @launch grid=(256,1,1) block=(1024,1,1) lds=%d" % LDS_BYTES)
out.append('.amdgcn_target "amdgcn-amd-amdhsa--gfx950"')
out.append(".text")
out.append(".globl %s_kernel" % NAME)
out.append(".p2align 8")
out.append(".type %s_kernel,@function" % NAME)
lab("%s_kernel" % NAME)
e("s_cmp_ge_u32 s2, 256")
e("s_cbranch_scc1 L_end")
e("s_load_dwordx16 s[16:31], s[0:1], 0")
e("s_load_dwordx8 s[32:39], s[0:1], 64")
e("v_and_b32 v%d, 63, v0" % vLANE)
e("v_lshrrev_b32 v%d, 6, v0" % vT0)
e("s_lshr_b32 s%d, s2, 5" % sB)
e("s_and_b32 s%d, s2, 31" % sH)
e("v_readfirstlane_b32 s%d, v%d" % (sW, vT0))
e("v_and_b32 v%d, 15, v%d" % (vC, vLANE))
e("v_lshrrev_b32 v%d, 4, v%d" % (vR, vLANE))
e("s_mov_b32 s%d, 0x3fb8aa3b" % sLOG2E)
e("s_and_b32 s%d, s%d, 1" % (sHP, sH))
e("s_waitcnt lgkmcnt(0)")
stamp()
e("v_mov_b32 v%d, 0" % vT0)
e("ds_write_b32 v%d, v%d offset:%d" % (vT0, vT0, L_CNT))
e("ds_write_b32 v%d, v%d offset:%d" % (vT0, vT0, L_RDY))
e("s_waitcnt lgkmcnt(0)")
e("s_barrier")
for srd, p in ((sKSRD, sK), (sVSRD, sV)):
    e("s_mov_b32 s%d, s%d" % (srd, p))
    e("s_and_b32 s%d, s%d, 0xffff" % (srd + 1, p + 1))
    e("s_mov_b32 s%d, 0x10000000" % (srd + 2))
    e("s_mov_b32 s%d, 0x00020000" % (srd + 3))
e("s_lshl_b32 s%d, s%d, 10" % (sTMP, sB))
e("v_lshlrev_b32 v%d, 4, v%d" % (vT1, vLANE))
e("v_add_u32 v%d, s%d, v%d" % (vT1, sTMP, vT1))
e("global_load_dwordx4 v[%d:%d], v%d, s[%d:%d]" % (vA0, vA0 + 3, vT1, sX, sX + 1))
issue("x")
e("s_lshl_b32 s%d, s%d, 8" % (sTMP, sH))
e("s_add_u32 s%d, s%d, s%d" % (sWQB, sWQ, sTMP))
e("s_addc_u32 s%d, s%d, 0" % (sWQB + 1, sWQ + 1))
e("s_lshl_b32 s%d, s2, 20" % sTMP)
e("s_lshl_b32 s%d, s%d, %d" % (sT2, sW, {0: 16, 1: 10, 2: 12}[ILV]))
e("s_add_u32 s%d, s%d, s%d" % (sTMP, sTMP, sT2))
e("v_lshlrev_b32 v%d, 4, v%d" % (vKOFF, vLANE))
e("v_add_u32 v%d, s%d, v%d" % (vKOFF, sTMP, vKOFF))
e("s_cmp_ge_u32 s%d, 8" % sW)
e("s_cbranch_scc1 L_kwave0")
c("q-waves: wq rows 64w + 4j + r")
e("s_lshl_b32 s%d, s%d, 19" % (sTMP, sW))
e("v_lshlrev_b32 v%d, 13, v%d" % (vWQOFF, vR))
e("v_lshl_add_u32 v%d, v%d, 4, v%d" % (vWQOFF, vC, vWQOFF))
e("v_add_u32 v%d, s%d, v%d" % (vWQOFF, sTMP, vWQOFF))
for j in range(16):
    e("global_load_dwordx4 %s, v%d, s[%d:%d]" % (vr(wqreg(j), 4), vWQOFF, sWQB, sWQB + 1))
    if j < 15:
        e("v_add_u32 v%d, 0x8000, v%d" % (vWQOFF, vWQOFF))
e("s_waitcnt vmcnt(16)")
e("s_branch L_ln")
lab("L_kwave0")
for i in range(NSLOT):
    issue_next()
e("s_waitcnt vmcnt(%d)" % NSLOT)
lab("L_ln")
stamp()

c("masks")
e("v_and_b32 v%d, 1, v%d" % (vT0, vC))
e("v_cmp_eq_u32 vcc, 1, v%d" % vT0)
e("v_mov_b32 v%d, 0xffff" % vT1)
e("v_mov_b32 v%d, 0xffff0000" % vT2)
e("v_cndmask_b32 v%d, v%d, v%d, vcc" % (vT1, vT1, vT2))
e("v_lshrrev_b32 v%d, 1, v%d" % (vT0, vC))
for t in range(4):
    e("v_cmp_eq_u32 vcc, %d, v%d" % (t, vT0))
    e("s_nop 1")
    e("v_cndmask_b32 v%d, 0, v%d, vcc" % (vMASK + t, vT1))

c("layernorm (each wave redundantly)")
for j in range(4):
    e("v_lshlrev_b32 v%d, 16, v%d" % (vXN + 2 * j, vA0 + j))
    e("v_and_b32 v%d, 0xffff0000, v%d" % (vXN + 2 * j + 1, vA0 + j))
e("v_add_f32 v%d, v%d, v%d" % (vT0, vXN, vXN + 1))
for j in range(2, 8):
    e("v_add_f32 v%d, v%d, v%d" % (vT0, vT0, vXN + j))
wave_sum(vT0, sXN)
e("v_mul_f32 v%d, 0x3b000000, v%d" % (vT0, vT0))
e("v_sub_f32 v%d, v%d, v%d" % (vT2, vXN, vT0))
e("v_mul_f32 v%d, v%d, v%d" % (vT1, vT2, vT2))
for j in range(1, 8):
    e("v_sub_f32 v%d, v%d, v%d" % (vT2, vXN + j, vT0))
    e("v_fmac_f32 v%d, v%d, v%d" % (vT1, vT2, vT2))
wave_sum(vT1, sXN)
e("v_mul_f32 v%d, 0x3b000000, v%d" % (vT1, vT1))
e("v_cvt_pk_bf16_f32 v%d, v%d, v%d" % (vT2, vT0, vT1))
e("v_lshlrev_b32 v%d, 16, v%d" % (vT0, vT2))
e("v_and_b32 v%d, 0xffff0000, v%d" % (vT1, vT2))
e("v_add_f32 v%d, 0x3727c5ac, v%d" % (vT1, vT1))
e("v_cvt_pk_bf16_f32 v%d, v%d, v%d" % (vT1, vT1, vT1))
e("v_and_b32 v%d, 0xffff0000, v%d" % (vT1, vT1))
e("v_sqrt_f32 v%d, v%d" % (vT1, vT1))
e("s_nop 0")
e("v_cvt_pk_bf16_f32 v%d, v%d, v%d" % (vT1, vT1, vT1))
e("v_and_b32 v%d, 0xffff0000, v%d" % (vT1, vT1))
e("v_rcp_f32 v%d, v%d" % (vT2, vT1))
e("s_nop 0")
e("v_fma_f32 v%d, -v%d, v%d, 1.0" % (vT3, vT1, vT2))
e("v_fmac_f32 v%d, v%d, v%d" % (vT2, vT3, vT2))
for j in range(0, 8, 2):
    e("v_sub_f32 v%d, v%d, v%d" % (vXN + j, vXN + j, vT0))
    e("v_sub_f32 v%d, v%d, v%d" % (vXN + j + 1, vXN + j + 1, vT0))
    e("v_cvt_pk_bf16_f32 v%d, v%d, v%d" % (vT3, vXN + j, vXN + j + 1))
    e("v_lshlrev_b32 v%d, 16, v%d" % (vXN + j, vT3))
    e("v_and_b32 v%d, 0xffff0000, v%d" % (vXN + j + 1, vT3))
    e("v_mul_f32 v%d, v%d, v%d" % (vU0, vXN + j, vT2))
    e("v_mul_f32 v%d, v%d, v%d" % (vU1, vXN + j + 1, vT2))
    e("v_fma_f32 v%d, -v%d, v%d, v%d" % (vXN + j, vU0, vT1, vXN + j))
    e("v_fma_f32 v%d, -v%d, v%d, v%d" % (vXN + j + 1, vU1, vT1, vXN + j + 1))
    e("v_fmac_f32 v%d, v%d, v%d" % (vU0, vXN + j, vT2))
    e("v_fmac_f32 v%d, v%d, v%d" % (vU1, vXN + j + 1, vT2))
    e("v_cvt_pk_bf16_f32 v%d, v%d, v%d" % (vT3, vU0, vU1))
    e("v_lshlrev_b32 v%d, 16, v%d" % (vXN + j, vT3))
    e("v_and_b32 v%d, 0xffff0000, v%d" % (vXN + j + 1, vT3))
e("s_lshl_b32 s%d, s%d, 2" % (sTMP, sW))
for i4 in range(4):
    e("s_add_u32 s%d, s%d, %d" % (sT2, sTMP, i4))
    for j in range(8):
        e("v_readlane_b32 s%d, v%d, s%d" % (sXN + i4 * 8 + j, vXN + j, sT2))
e("s_cmp_ge_u32 s%d, 8" % sW)
e("s_cbranch_scc1 L_qdone")
e("v_lshlrev_b32 v%d, 5, v%d" % (vT0, vLANE))
e("ds_write_b128 v%d, v[%d:%d] offset:%d" % (vT0, vXN, vXN + 3, L_XN))
e("ds_write_b128 v%d, v[%d:%d] offset:%d" % (vT0, vXN + 4, vXN + 7, L_XN + 16))
e("s_waitcnt lgkmcnt(0)")
c("xn for wq rows: (64w + 4j + r)*4")
e("s_lshl_b32 s%d, s%d, 8" % (sTMP, sW))
e("v_lshlrev_b32 v%d, 2, v%d" % (vT0, vR))
e("v_add_u32 v%d, s%d, v%d" % (vT0, sTMP, vT0))
for j in range(16):
    e("ds_read_b32 v%d, v%d offset:%d" % (vS + 16 + j, vT0, L_XN + j * 16))
e("s_waitcnt lgkmcnt(0)")
for j in range(16):
    e("s_waitcnt vmcnt(%d)" % (15 - j))
    sl = wqreg(j)
    for q in range(4):
        e("v_lshlrev_b32 v%d, 16, v%d" % (vU0, sl + q))
        e("v_and_b32 v%d, 0xffff0000, v%d" % (vU1, sl + q))
        if j == 0:
            e("v_mul_f32 v%d, v%d, v%d" % (vAB + 2 * q, vU0, vS + 16 + j))
            e("v_mul_f32 v%d, v%d, v%d" % (vAB + 2 * q + 1, vU1, vS + 16 + j))
        else:
            e("v_fmac_f32 v%d, v%d, v%d" % (vAB + 2 * q, vU0, vS + 16 + j))
            e("v_fmac_f32 v%d, v%d, v%d" % (vAB + 2 * q + 1, vU1, vS + 16 + j))
e("s_lshl_b32 s%d, s%d, 11" % (sTMP, sW))
e("v_lshlrev_b32 v%d, 9, v%d" % (vT0, vR))
e("v_lshl_add_u32 v%d, v%d, 5, v%d" % (vT0, vC, vT0))
e("v_add_u32 v%d, s%d, v%d" % (vT0, sTMP, vT0))
e("ds_write_b128 v%d, v[%d:%d] offset:%d" % (vT0, vAB, vAB + 3, L_QP))
e("ds_write_b128 v%d, v[%d:%d] offset:%d" % (vT0, vAB + 4, vAB + 7, L_QP + 16))
e("s_waitcnt lgkmcnt(0)")
e("v_mov_b32 v%d, 0" % vT0)
e("v_mov_b32 v%d, 1" % vT1)
e("v_cmp_eq_u32 vcc, 0, v%d" % vLANE)
e("s_and_saveexec_b64 s[%d:%d], vcc" % (sEX, sEX + 1))
e("ds_add_u32 v%d, v%d offset:%d" % (vT0, vT1, L_CNT))
e("s_mov_b64 exec, s[%d:%d]" % (sEX, sEX + 1))
c("waves 0,1: q sum over 32 partials")
e("s_cmp_gt_u32 s%d, 1" % sW)
e("s_cbranch_scc1 L_st2_done")
lab("L_spin1")
e("ds_read_b32 v%d, v%d offset:%d" % (vT2, vT0, L_CNT))
e("s_waitcnt lgkmcnt(0)")
e("v_readfirstlane_b32 s%d, v%d" % (sTMP, vT2))
e("s_cmp_lt_u32 s%d, 8" % sTMP)
e("s_cbranch_scc1 L_spin1")
e("v_lshlrev_b32 v%d, 2, v0" % vT0)
for k in range(32):
    e("ds_read_b32 v%d, v%d offset:%d" % (vS + (k % 16), vT0, L_QP + k * 512))
    if k % 16 == 15:
        e("s_waitcnt lgkmcnt(0)")
        for j in range(16):
            if k == 15 and j == 0:
                e("v_mov_b32 v%d, v%d" % (vT1, vS))
            else:
                e("v_add_f32 v%d, v%d, v%d" % (vT1, vT1, vS + j))
e("v_cvt_pk_bf16_f32 v%d, v%d, v%d" % (vT1, vT1, vT1))
e("v_lshlrev_b32 v%d, 1, v0" % vT0)
e("ds_write_b16 v%d, v%d offset:%d" % (vT0, vT1, L_QB))
e("s_waitcnt lgkmcnt(0)")
e("v_mov_b32 v%d, 0" % vT0)
e("v_mov_b32 v%d, 1" % vT1)
e("v_cmp_eq_u32 vcc, 0, v%d" % vLANE)
e("s_and_saveexec_b64 s[%d:%d], vcc" % (sEX, sEX + 1))
e("ds_add_u32 v%d, v%d offset:%d" % (vT0, vT1, L_RDY))
e("s_mov_b64 exec, s[%d:%d]" % (sEX, sEX + 1))
lab("L_st2_done")
c("q-waves now issue their K loads (same registers/order as K-waves)")
save = list(issued); next_issue[0] = 0; del issued[:]
issued.append("x")
for i in range(NSLOT):
    issue_next()
assert issued == save, (issued, save)
lab("L_qdone")
e("v_mov_b32 v%d, 0" % vT0)
lab("L_spin2")
e("ds_read_b32 v%d, v%d offset:%d" % (vT2, vT0, L_RDY))
e("s_waitcnt lgkmcnt(0)")
e("v_readfirstlane_b32 s%d, v%d" % (sTMP, vT2))
e("s_cmp_lt_u32 s%d, 2" % sTMP)
e("s_cbranch_scc0 L_spin2d")
e("s_sleep 2")
e("s_branch L_spin2")
lab("L_spin2d")
e("v_lshlrev_b32 v%d, 4, v%d" % (vT0, vC))
e("ds_read_b128 v[%d:%d], v%d offset:%d" % (vQ, vQ + 3, vT0, L_QB))
e("v_mov_b32 v%d, 0xff800000" % vMX)
emit_gu_loads()
e("s_waitcnt lgkmcnt(0)")
stamp()

c("phase 1")
for g in range(16):
    regs = [vT0, vT1, vT2, vT3]
    if g == 8:
        c("gate/up FMAs (deferred)")
        wait_for("gu31")
        for i in range(32):
            e("v_lshlrev_b32 v%d, 16, v%d" % (vU0, gureg(i)))
            e("v_and_b32 v%d, 0xffff0000, v%d" % (vU1, gureg(i)))
            if i == 0:
                e("v_mul_f32 v%d, s%d, v%d" % (vA0, sXN + i, vU0))
                e("v_mul_f32 v%d, s%d, v%d" % (vA0 + 1, sXN + i, vU1))
            else:
                e("v_fmac_f32 v%d, s%d, v%d" % (vA0, sXN + i, vU0))
                e("v_fmac_f32 v%d, s%d, v%d" % (vA0 + 1, sXN + i, vU1))
        e("s_lshl_b32 s%d, s%d, 9" % (sTMP, sW))
        e("v_lshlrev_b32 v%d, 3, v%d" % (vT0, vLANE))
        e("v_add_u32 v%d, s%d, v%d" % (vT0, sTMP, vT0))
        e("ds_write_b64 v%d, v[%d:%d] offset:%d" % (vT0, vA0, vA0 + 1, L_GU))
    for u in range(4):
        i = 4 * g + u
        wait_for("K%d" % i)
        s = slot(sidx["K%d" % i])
        e("v_dot2_f32_bf16 v%d, v%d, v%d, 0" % (regs[u], s, vQ))
        for j in range(1, 4):
            e("v_dot2_f32_bf16 v%d, v%d, v%d, v%d" % (regs[u], s + j, vQ + j, regs[u]))
        issue_next()
    for rot in (8, 4, 2, 1):
        for u in range(4):
            e("v_add_f32_dpp v%d, v%d, v%d row_ror:%d row_mask:0xf bank_mask:0xf" % (regs[u], regs[u], regs[u], rot))
    e("v_cvt_pk_bf16_f32 v%d, v%d, v%d" % (vU0, vT0, vT1))
    e("v_cvt_pk_bf16_f32 v%d, v%d, v%d" % (vU1, vT2, vT3))
    e("v_lshlrev_b32 v%d, 16, v%d" % (vT0, vU0))
    e("v_and_b32 v%d, 0xffff0000, v%d" % (vT1, vU0))
    e("v_lshlrev_b32 v%d, 16, v%d" % (vT2, vU1))
    e("v_and_b32 v%d, 0xffff0000, v%d" % (vT3, vU1))
    for u in range(4):
        e("v_mul_f32 v%d, 0x3db504f3, v%d" % (regs[u], regs[u]))
    e("v_cvt_pk_bf16_f32 v%d, v%d, v%d" % (vS + 2 * g, vT0, vT1))
    e("v_cvt_pk_bf16_f32 v%d, v%d, v%d" % (vS + 2 * g + 1, vT2, vT3))
    e("v_lshlrev_b32 v%d, 16, v%d" % (vT0, vS + 2 * g))
    e("v_and_b32 v%d, 0xffff0000, v%d" % (vT1, vS + 2 * g))
    e("v_lshlrev_b32 v%d, 16, v%d" % (vT2, vS + 2 * g + 1))
    e("v_and_b32 v%d, 0xffff0000, v%d" % (vT3, vS + 2 * g + 1))
    e("v_max3_f32 v%d, v%d, v%d, v%d" % (vMX, vT0, vT1, vMX))
    e("v_max3_f32 v%d, v%d, v%d, v%d" % (vMX, vT2, vT3, vMX))
stamp()

c("wave-local max")
e("s_nop 1")
for k in range(4):
    e("v_readlane_b32 s%d, v%d, %d" % (sXN + k, vMX, 16 * k))
e("s_nop 1")
e("v_mov_b32 v%d, s%d" % (vMX, sXN))
for k in range(1, 4):
    e("v_max_f32 v%d, s%d, v%d" % (vMX, sXN + k, vMX))
e("v_mul_f32 v%d, s%d, v%d" % (vNEGM, sLOG2E, vMX))
e("v_sub_f32 v%d, 0, v%d" % (vNEGM, vNEGM))
e("v_mov_b32 v%d, 0" % vU0)
for k in range(32):
    e("v_lshlrev_b32 v%d, 16, v%d" % (vT0, vS + k))
    e("v_and_b32 v%d, 0xffff0000, v%d" % (vT1, vS + k))
    e("v_fma_f32 v%d, v%d, s%d, v%d" % (vT0, vT0, sLOG2E, vNEGM))
    e("v_fma_f32 v%d, v%d, s%d, v%d" % (vT1, vT1, sLOG2E, vNEGM))
    e("v_exp_f32 v%d, v%d" % (vT0, vT0))
    e("v_exp_f32 v%d, v%d" % (vT1, vT1))
    e("s_nop 0")
    e("v_add_f32 v%d, v%d, v%d" % (vU0, vU0, vT0))
    e("v_add_f32 v%d, v%d, v%d" % (vU0, vU0, vT1))
e("s_nop 1")
for k in range(4):
    e("v_readlane_b32 s%d, v%d, %d" % (sXN + k, vU0, 16 * k))
e("s_nop 1")
e("v_mov_b32 v%d, s%d" % (vU0, sXN))
for k in range(1, 4):
    e("v_add_f32 v%d, s%d, v%d" % (vU0, sXN + k, vU0))
e("s_lshl_b32 s%d, s%d, 3" % (sTMP, sW))
e("v_mov_b32 v%d, s%d" % (vT0, sTMP))
e("v_mov_b32 v%d, v%d" % (vU1, vU0))
e("v_mov_b32 v%d, v%d" % (vU0, vMX))
e("ds_write_b64 v%d, v[%d:%d] offset:%d" % (vT0, vU0, vU1, L_ST))
e("s_waitcnt lgkmcnt(0)")
e("s_barrier")
e("v_mov_b32 v%d, 0" % vT0)
for k in range(8):
    e("ds_read_b128 v[%d:%d], v%d offset:%d" % (vAA + 4 * (k % 4), vAA + 4 * (k % 4) + 3, vT0, L_ST + k * 16))
    if k % 4 == 3:
        e("s_waitcnt lgkmcnt(0)")
        if k == 3:
            e("v_max3_f32 v%d, v%d, v%d, v%d" % (vMX, vAA, vAA + 2, vAA + 4))
            e("v_max3_f32 v%d, v%d, v%d, v%d" % (vMX, vAA + 6, vAA + 8, vMX))
            e("v_max3_f32 v%d, v%d, v%d, v%d" % (vMX, vAA + 10, vAA + 12, vMX))
            e("v_max_f32 v%d, v%d, v%d" % (vMX, vAA + 14, vMX))
        else:
            e("v_max3_f32 v%d, v%d, v%d, v%d" % (vMX, vAA, vAA + 2, vMX))
            e("v_max3_f32 v%d, v%d, v%d, v%d" % (vMX, vAA + 4, vAA + 6, vMX))
            e("v_max3_f32 v%d, v%d, v%d, v%d" % (vMX, vAA + 8, vAA + 10, vMX))
            e("v_max3_f32 v%d, v%d, v%d, v%d" % (vMX, vAA + 12, vAA + 14, vMX))
e("v_mul_f32 v%d, s%d, v%d" % (vNEGM, sLOG2E, vMX))
e("v_sub_f32 v%d, 0, v%d" % (vNEGM, vNEGM))
e("v_mov_b32 v%d, 0" % vINV)
for k in range(8):
    e("ds_read_b128 v[%d:%d], v%d offset:%d" % (vAA + 4 * (k % 4), vAA + 4 * (k % 4) + 3, vT0, L_ST + k * 16))
    if k % 4 == 3:
        e("s_waitcnt lgkmcnt(0)")
        for j in range(8):
            e("v_fma_f32 v%d, v%d, s%d, v%d" % (vT1, vAA + 2 * j, sLOG2E, vNEGM))
            e("v_exp_f32 v%d, v%d" % (vT1, vT1))
            e("s_nop 0")
            e("v_fmac_f32 v%d, v%d, v%d" % (vINV, vT1, vAA + 2 * j + 1))
e("v_rcp_f32 v%d, v%d" % (vT1, vINV))
e("s_nop 0")
e("v_fma_f32 v%d, -v%d, v%d, 1.0" % (vT2, vINV, vT1))
e("v_fma_f32 v%d, v%d, v%d, v%d" % (vINV, vT2, vT1, vT1))
for t in range(4):
    e("v_mov_b32 v%d, 0" % (vACC + t))
c("wave 2: gate/up sums -> h")
e("s_cmp_lg_u32 s%d, 2" % sW)
e("s_cbranch_scc1 L_gu_done")
e("v_lshlrev_b32 v%d, 2, v%d" % (vT0, vLANE))
for half in range(2):
    for k in range(16):
        e("ds_read_b32 v%d, v%d offset:%d" % (vAA + k, vT0, L_GU + k * 512 + half * 256))
    e("s_waitcnt lgkmcnt(0)")
    e("v_mov_b32 v%d, v%d" % (vT1 + half, vAA))
    for k in range(1, 16):
        e("v_add_f32 v%d, v%d, v%d" % (vT1 + half, vT1 + half, vAA + k))
e("v_cvt_pk_bf16_f32 v%d, v%d, v%d" % (vT3, vT1, vT2))
e("v_lshlrev_b32 v%d, 16, v%d" % (vT1, vT3))
e("v_and_b32 v%d, 0xffff0000, v%d" % (vT2, vT3))
e("v_max_f32 v%d, 0, v%d" % (vT1, vT1))
e("v_mul_f32 v%d, v%d, v%d" % (vT1, vT1, vT2))
e("v_cvt_pk_bf16_f32 v%d, v%d, v%d" % (vT1, vT1, vT1))
e("v_and_b32 v%d, 0xffff0000, v%d" % (vT1, vT1))
e("ds_write_b32 v%d, v%d offset:%d" % (vT0, vT1, L_HB))
lab("L_gu_done")
e("s_lshl_b32 s%d, s%d, 17" % (sTMP, sH))
e("s_add_u32 s%d, s%d, s%d" % (sWOB, sWO, sTMP))
e("s_addc_u32 s%d, s%d, 0" % (sWOB + 1, sWO + 1))
e("s_lshl_b32 s%d, s%d, 13" % (sTMP, sW))
e("v_lshlrev_b32 v%d, 4, v%d" % (vWOFF, vLANE))
e("v_add_u32 v%d, s%d, v%d" % (vWOFF, sTMP, vWOFF))
e("v_add_u32 v%d, 0x1000, v%d" % (vWOFF2, vWOFF))
stamp()

c("phase 2")
def p_ops(i, t):
    k = i // 2
    if i % 2 == 0:
        e("v_lshlrev_b32 v%d, 16, v%d" % (t, vS + k))
    else:
        e("v_and_b32 v%d, 0xffff0000, v%d" % (t, vS + k))
    e("v_fma_f32 v%d, v%d, s%d, v%d" % (t, t, sLOG2E, vNEGM))
    e("v_exp_f32 v%d, v%d" % (t, t))
e("s_mul_i32 s%d, s%d, 43" % (sT3, sH))
e("s_add_u32 s%d, s%d, s%d" % (sTMP, sT3, sW))
e("s_add_u32 s%d, s%d, 32" % (sT2, sW))
e("s_min_u32 s%d, s%d, 42" % (sT2, sT2))
e("s_add_u32 s%d, s%d, s%d" % (sT2, sT2, sT3))
e("s_lshl_b32 s%d, s%d, 10" % (sTMP, sTMP))
e("s_lshl_b32 s%d, s%d, 10" % (sT2, sT2))
e("v_lshlrev_b32 v%d, 4, v%d" % (vT2, vLANE))
e("v_add_u32 v%d, s%d, v%d" % (vWDOFF[0], sTMP, vT2))
e("v_add_u32 v%d, 0x4000, v%d" % (vWDOFF[1], vWDOFF[0]))
e("v_add_u32 v%d, s%d, v%d" % (vWDOFF[2], sT2, vT2))
for i in range(0, 64, 2):
    p_ops(i, vT0)
    p_ops(i + 1, vT1)
    e("v_mul_f32 v%d, v%d, v%d" % (vT0, vT0, vINV))
    e("v_mul_f32 v%d, v%d, v%d" % (vT1, vT1, vINV))
    e("v_cvt_pk_bf16_f32 v%d, v%d, v%d" % (vT0, vT0, vT0))
    e("v_cvt_pk_bf16_f32 v%d, v%d, v%d" % (vT1, vT1, vT1))
    for u, t in ((0, vT0), (1, vT1)):
        for m in range(4):
            e("v_and_b32 v%d, v%d, v%d" % (vA0 + m, vMASK + m, t))
        wait_for("V%d" % (i + u))
        e("s_nop 0")
        s = slot(sidx["V%d" % (i + u)])
        e("v_mfma_f32_16x16x32_bf16 v[%d:%d], v[%d:%d], v[%d:%d], v[%d:%d]" % (vACC, vACC + 3, vA0, vA0 + 3, s, s + 3, vACC, vACC + 3))
        issue_next()
assert next_issue[0] == len(stream)
stamp()

c("o partial -> LDS")
e("s_nop 7")
e("s_nop 1")
e("v_lshlrev_b32 v%d, 4, v%d" % (vT0, vR))
e("v_lshl_add_u32 v%d, v%d, 5, v%d" % (vT0, vC, vT0))
e("s_lshl_b32 s%d, s%d, 9" % (sTMP, sW))
e("v_add_u32 v%d, s%d, v%d" % (vT0, sTMP, vT0))
e("v_cmp_gt_u32 vcc, 32, v%d" % vLANE)
e("s_and_saveexec_b64 s[%d:%d], vcc" % (sEX, sEX + 1))
e("ds_write_b128 v%d, v[%d:%d] offset:%d" % (vT0, vACC, vACC + 3, L_OP))
e("s_mov_b64 exec, s[%d:%d]" % (sEX, sEX + 1))
e("s_waitcnt lgkmcnt(0)")
e("s_barrier")
e("v_and_b32 v%d, 7, v%d" % (vT0, vLANE))
e("v_lshlrev_b32 v%d, 2, v%d" % (vT0, vT0))
e("s_lshl_b32 s%d, s%d, 5" % (sTMP, sW))
e("v_add_u32 v%d, s%d, v%d" % (vT0, sTMP, vT0))
for k in range(16):
    e("ds_read_b32 v%d, v%d offset:%d" % (vS + k, vT0, L_OP + k * 512))
e("s_add_u32 s%d, s%d, s%d" % (sTMP, sW, sHP))
e("s_lshl_b32 s%d, s%d, 2" % (sTMP, sTMP))
e("v_mov_b32 v%d, s%d" % (vT1, sTMP))
e("ds_read_b32 v%d, v%d offset:%d" % (vS + 16, vT1, L_HB))
e("ds_read_b32 v%d, v%d offset:%d" % (vS + 17, vT1, L_HB + 64))
e("ds_read_b32 v%d, v%d offset:%d" % (vS + 18, vT1, L_HB + 128))
e("s_waitcnt lgkmcnt(0)")
e("v_mov_b32 v%d, v%d" % (vT1, vS))
for k in range(1, 16):
    e("v_add_f32 v%d, v%d, v%d" % (vT1, vT1, vS + k))
e("v_cvt_pk_bf16_f32 v%d, v%d, v%d" % (vT1, vT1, vT1))
e("v_and_b32 v%d, 0xffff0000, v%d" % (vT1, vT1))
e("s_nop 1")
for j in range(8):
    e("v_readlane_b32 s%d, v%d, %d" % (sXN + j, vT1, j))
for j in range(3):
    e("v_readfirstlane_b32 s%d, v%d" % (sXN + 8 + j, vS + 16 + j))
e("s_cmp_ge_u32 s%d, 11" % sW)
e("s_cselect_b32 s%d, 0, s%d" % (sXN + 10, sXN + 10))
for j in range(8):
    wait_for("wo%d" % j)
    s = slot(sidx["wo%d" % j])
    for q in range(4):
        e("v_lshlrev_b32 v%d, 16, v%d" % (vU0, s + q))
        e("v_and_b32 v%d, 0xffff0000, v%d" % (vU1, s + q))
        if j == 0:
            e("v_mul_f32 v%d, s%d, v%d" % (vAA + 2 * q, sXN + j, vU0))
            e("v_mul_f32 v%d, s%d, v%d" % (vAA + 2 * q + 1, sXN + j, vU1))
        else:
            e("v_fmac_f32 v%d, s%d, v%d" % (vAA + 2 * q, sXN + j, vU0))
            e("v_fmac_f32 v%d, s%d, v%d" % (vAA + 2 * q + 1, sXN + j, vU1))
for j in range(3):
    wait_for("wd%d" % j)
    s = slot(sidx["wd%d" % j])
    for q in range(4):
        e("v_lshlrev_b32 v%d, 16, v%d" % (vU0, s + q))
        e("v_and_b32 v%d, 0xffff0000, v%d" % (vU1, s + q))
        if j == 0:
            e("v_mul_f32 v%d, s%d, v%d" % (vAB + 2 * q, sXN + 8 + j, vU0))
            e("v_mul_f32 v%d, s%d, v%d" % (vAB + 2 * q + 1, sXN + 8 + j, vU1))
        else:
            e("v_fmac_f32 v%d, s%d, v%d" % (vAB + 2 * q, sXN + 8 + j, vU0))
            e("v_fmac_f32 v%d, s%d, v%d" % (vAB + 2 * q + 1, sXN + 8 + j, vU1))
e("s_lshl_b32 s%d, s%d, 12" % (sTMP, sW))
e("v_lshlrev_b32 v%d, 5, v%d" % (vT0, vLANE))
e("v_add_u32 v%d, s%d, v%d" % (vT0, sTMP, vT0))
e("v_add_u32 v%d, %d, v%d" % (vT0, L_FIN, vT0))
e("ds_write_b128 v%d, v[%d:%d] offset:%d" % (vT0, vAA, vAA + 3, 0))
e("ds_write_b128 v%d, v[%d:%d] offset:%d" % (vT0, vAA + 4, vAA + 7, 16))
e("ds_write_b128 v%d, v[%d:%d] offset:%d" % (vT0, vAB, vAB + 3, 2048))
e("ds_write_b128 v%d, v[%d:%d] offset:%d" % (vT0, vAB + 4, vAB + 7, 2064))
e("s_waitcnt lgkmcnt(0)")
e("s_barrier")
e("v_lshlrev_b32 v%d, 2, v0" % vT0)
e("v_add_u32 v%d, %d, v%d" % (vT2, L_FIN, vT0))
for k in range(16):
    e("ds_read_b32 v%d, v%d offset:%d" % (vS + k, vT2, k * 4096))
e("s_waitcnt lgkmcnt(0)")
e("v_mov_b32 v%d, v%d" % (vT1, vS))
for k in range(1, 16):
    e("v_add_f32 v%d, v%d, v%d" % (vT1, vT1, vS + k))
e("s_lshl_b32 s%d, s2, 12" % sTMP)
e("s_add_u32 s%d, s%d, s%d" % (sSLAB, sWS, sTMP))
e("s_addc_u32 s%d, s%d, 0" % (sSLAB + 1, sWS + 1))
e("global_store_dword v%d, v%d, s[%d:%d] sc0 sc1" % (vT0, vT1, sSLAB, sSLAB + 1))
e("s_waitcnt vmcnt(0)")
e("s_barrier")
stamp()
if DIAG:
    e("s_mov_b32 s%d, 0" % sT4)
    e("s_cmp_eq_u32 s2, 0")
    e("s_cselect_b32 s%d, 4, s%d" % (sT4, sT4))
    e("s_cmp_eq_u32 s2, 100")
    e("s_cselect_b32 s%d, 36, s%d" % (sT4, sT4))
    e("s_cmp_eq_u32 s2, 255")
    e("s_cselect_b32 s%d, 68, s%d" % (sT4, sT4))
    e("s_cmp_eq_u32 s%d, 0" % sW)
    e("s_cselect_b32 s%d, s%d, 0" % (sT3, sT4))
    e("s_cmp_eq_u32 s%d, 15" % sW)
    e("s_cselect_b32 s%d, 100, 0" % sT2)
    e("s_cmp_eq_u32 s2, 0")
    e("s_cselect_b32 s%d, s%d, 0" % (sT2, sT2))
    e("s_or_b32 s%d, s%d, s%d" % (sT4, sT3, sT2))
    e("s_cmp_eq_u32 s%d, 0" % sT4)
    e("s_cbranch_scc1 L_nodiag")
    e("v_mov_b32 v%d, s%d" % (vT0, sT4))
    for k in range(7):
        e("v_mov_b32 v%d, s%d" % (vT1, 88 + k))
        e("global_store_dword v%d, v%d, s[%d:%d] offset:%d" % (vT0, vT1, sDBG, sDBG + 1, 4 * k))
    e("s_waitcnt vmcnt(0)")
    lab("L_nodiag")
c("counter")
e("s_cmp_lg_u32 s%d, 0" % sW)
e("s_cbranch_scc1 L_cnt_done")
e("s_lshl_b32 s%d, s%d, 5" % (sTMP, sB))
e("v_mov_b32 v%d, s%d" % (vT0, sTMP))
e("v_mov_b32 v%d, 1" % vT1)
e("v_cmp_eq_u32 vcc, 0, v%d" % vLANE)
e("s_and_saveexec_b64 s[%d:%d], vcc" % (sEX, sEX + 1))
e("global_atomic_add v%d, v%d, v%d, s[%d:%d] sc0 sc1" % (vT2, vT0, vT1, sDBG, sDBG + 1))
e("s_waitcnt vmcnt(0)")
e("v_mov_b32 v%d, 0" % vT0)
e("ds_write_b32 v%d, v%d offset:%d" % (vT0, vT2, L_FLAG))
e("s_mov_b64 exec, s[%d:%d]" % (sEX, sEX + 1))
e("s_waitcnt lgkmcnt(0)")
lab("L_cnt_done")
e("s_barrier")
e("v_mov_b32 v%d, 0" % vT0)
e("ds_read_b32 v%d, v%d offset:%d" % (vT1, vT0, L_FLAG))
e("s_waitcnt lgkmcnt(0)")
e("v_readfirstlane_b32 s%d, v%d" % (sTMP, vT1))
e("s_cmp_lg_u32 s%d, 31" % sTMP)
e("s_cbranch_scc1 L_end")
c("last workgroup of this batch: final reduce")
e("s_lshl_b32 s%d, s%d, 17" % (sTMP, sB))
e("s_add_u32 s%d, s%d, s%d" % (sSLAB, sWS, sTMP))
e("s_addc_u32 s%d, s%d, 0" % (sSLAB + 1, sWS + 1))
e("v_lshlrev_b32 v%d, 2, v0" % vT0)
for k in range(32):
    e("global_load_dword v%d, v%d, s[%d:%d] sc0 sc1" % (vS + k, vT0, sSLAB, sSLAB + 1))
    if k < 31:
        e("v_add_u32 v%d, 0x1000, v%d" % (vT0, vT0))
e("v_and_b32 v%d, 511, v0" % vT2)
e("v_lshlrev_b32 v%d, 1, v%d" % (vT2, vT2))
e("s_lshl_b32 s%d, s%d, 10" % (sTMP, sB))
e("v_add_u32 v%d, s%d, v%d" % (vT2, sTMP, vT2))
e("global_load_ushort v%d, v%d, s[%d:%d]" % (vT3, vT2, sX, sX + 1))
e("s_waitcnt vmcnt(0)")
e("v_mov_b32 v%d, v%d" % (vT1, vS))
for k in range(1, 32):
    e("v_add_f32 v%d, v%d, v%d" % (vT1, vT1, vS + k))
e("v_cvt_pk_bf16_f32 v%d, v%d, v%d" % (vT1, vT1, vT1))
e("v_and_b32 v%d, 0xffff0000, v%d" % (vT1, vT1))
e("v_and_b32 v%d, 511, v0" % vT0)
e("v_lshlrev_b32 v%d, 2, v%d" % (vT0, vT0))
e("v_add_u32 v%d, %d, v%d" % (vT0, L_B, vT0))
e("s_cmp_lt_u32 s%d, 8" % sW)
e("s_cbranch_scc1 L_fa")
e("ds_write_b32 v%d, v%d" % (vT0, vT1))
e("s_waitcnt lgkmcnt(0)")
lab("L_fa")
e("s_barrier")
e("s_cmp_ge_u32 s%d, 8" % sW)
e("s_cbranch_scc1 L_end")
e("ds_read_b32 v%d, v%d" % (vU0, vT0))
e("v_lshlrev_b32 v%d, 16, v%d" % (vT3, vT3))
e("v_add_f32 v%d, v%d, v%d" % (vT1, vT3, vT1))
e("v_cvt_pk_bf16_f32 v%d, v%d, v%d" % (vT1, vT1, vT1))
e("v_and_b32 v%d, 0xffff0000, v%d" % (vT1, vT1))
e("s_waitcnt lgkmcnt(0)")
e("v_add_f32 v%d, v%d, v%d" % (vT1, vT1, vU0))
e("v_cvt_pk_bf16_f32 v%d, v%d, v%d" % (vT1, vT1, vT1))
e("global_store_short v%d, v%d, s[%d:%d]" % (vT2, vT1, sOUT, sOUT + 1))
lab("L_end")
e("s_endpgm")
out.append('.section .rodata,"a"')
out.append(".p2align 6")
out.append(".amdhsa_kernel %s_kernel" % NAME)
out.append("  .amdhsa_next_free_vgpr 128")
out.append("  .amdhsa_next_free_sgpr 96")
out.append("  .amdhsa_accum_offset 128")
out.append("  .amdhsa_group_segment_fixed_size 0")
out.append("  .amdhsa_kernarg_size 96")
out.append("  .amdhsa_user_sgpr_count 2")
out.append("  .amdhsa_user_sgpr_kernarg_segment_ptr 1")
out.append("  .amdhsa_system_sgpr_workgroup_id_x 1")
out.append(".end_amdhsa_kernel")
print("\n".join(out))
```
